```python
import torch

def _softmax(x, axis=-1):
    return torch.softmax(x, dim=axis)

def _gelu(x):
    return torch.nn.functional.gelu(x, approximate='tanh')

def _silu(x):
    return torch.nn.functional.silu(x)

def _sigmoid(x):
    return torch.sigmoid(x)

def _layernorm(x, axis=-1, eps=1e-05):
    m = x.mean(dim=axis, keepdim=True)
    v = x.var(dim=axis, keepdim=True, unbiased=False)
    return (x - m) / torch.sqrt(v + eps)

def _scatter_add(tgt, idx, src, axis=0):
    return tgt.clone().index_add_(axis, idx, src)

def _segment_sum(src, seg, n):
    out = torch.zeros((n,) + src.shape[1:], dtype=src.dtype)
    return out.index_add_(0, seg, src)

def _pad(x, pw):
    flat = tuple((v for pair in reversed(pw) for v in pair))
    return torch.nn.functional.pad(x, flat)
kernel_name = 'parallel_sum__softmax_full_mha__mixer_gmlp__prompt'

def setup_inputs():

    _w = lambda a: (lambda t: t.to(torch.bfloat16) if t.is_floating_point() else t)(torch.as_tensor(a))

    def _A_setup():
        B, S, D = (1, 2048, 512)
        return {'x': _w((lambda *s: torch.randn(*s, dtype=torch.bfloat16) * 0.05)(B, S, D)), 'wqkv': _w((lambda *s: torch.randn(*s, dtype=torch.bfloat16) * 0.2)(D, 3 * D)), 'wo': _w((lambda *s: torch.randn(*s, dtype=torch.bfloat16) * 0.1)(D, D))}
    _A_in = _A_setup()

    def _B_setup():
        B, S, D, F = (1, 2048, 512, 1376)
        Fh = F // 2
        return {'x': _w((lambda *s: torch.randn(*s, dtype=torch.bfloat16) * 0.05)(B, S, D)), 'w_in': _w((lambda *s: torch.randn(*s, dtype=torch.bfloat16) * 0.8)(D, 2 * Fh)), 'w_sp': _w(0.01 * (lambda *s: torch.randn(*s, dtype=torch.bfloat16) * 0.8)(S, S)), 'b_sp': _w(1.0 + 0.01 * (lambda *s: torch.randn(*s, dtype=torch.bfloat16) * 0.1)(S)), 'w_out': _w((lambda *s: torch.randn(*s, dtype=torch.bfloat16) * 0.1)(Fh, D))}
    _B_in = _B_setup()
    return {'A_x': _A_in['x'], 'A_wqkv': _A_in['wqkv'], 'A_wo': _A_in['wo'], 'B_x': _B_in['x'], 'B_w_in': _B_in['w_in'], 'B_w_sp': _B_in['w_sp'], 'B_b_sp': _B_in['b_sp'], 'B_w_out': _B_in['w_out']}

def reference(A_x, A_wqkv, A_wo, B_x, B_w_in, B_w_sp, B_b_sp, B_w_out):

    def _A_ref(x, wqkv, wo):
        B, S, D = x.shape
        H = 32
        Dh = D // H
        qkv = (lambda x, *d: x.permute(*d))((x @ wqkv).reshape(B, S, 3, H, Dh), 2, 0, 3, 1, 4)
        q, k, v = (qkv[0], qkv[1], qkv[2])
        scale = Dh ** (-0.5)
        scores = torch.einsum('bhqd,bhkd->bhqk', q, k) * scale
        p = _softmax(scores, axis=-1)
        o = torch.einsum('bhqk,bhkd->bhqd', p, v)
        return (lambda x, *d: x.permute(*d))(o, 0, 2, 1, 3).reshape(B, S, D) @ wo

    def _B_ref(x, w_in, w_sp, b_sp, w_out):
        B, S, D = x.shape
        F = w_in.shape[-1]
        Fh = F // 2
        z = _gelu(torch.einsum('bsd,df->bsf', x, w_in))
        z1 = z[..., :Fh].clone()
        z2 = _layernorm(z[..., Fh:], axis=-1)
        g = torch.einsum('ts,bsf->btf', w_sp, z2) + b_sp[None, :, None]
        return torch.einsum('bsf,fd->bsd', z1 * g, w_out)
    x = A_x
    xn = _layernorm(x, axis=-1)
    return x + _A_ref(xn, A_wqkv, A_wo) + _B_ref(xn, B_w_in, B_w_sp, B_b_sp, B_w_out)
```

```python
import sys, os, subprocess, struct, ctypes
sys.path.insert(0, "cdna_kernels")
import numpy as np

def gen(name, roles, iters, nwaves, lds=0, vgpr=256, pre=""):
    s = []
    s.append(f"; @launch grid=(256,1,1) block=({nwaves*64},1,1) lds={lds}")
    s.append('.amdgcn_target "amdgcn-amd-amdhsa--gfx950"')
    s.append(".text")
    s.append(f".globl {name}\n.p2align 8\n.type {name},@function\n{name}:")
    s.append("""
    s_load_dwordx2 s[4:5], s[0:1], 0
    v_lshrrev_b32 v1, 6, v0
    s_nop 1
    v_readfirstlane_b32 s20, v1
    v_and_b32 v2, 63, v0
    v_lshlrev_b32 v3, 4, v0
    s_waitcnt lgkmcnt(0)
    s_mov_b32 s8, s4
    s_mov_b32 s9, s5
    s_mov_b32 s10, 0x100000
    s_mov_b32 s11, 0x20000
""")
    for r in range(4, vgpr):
        s.append(f"    v_mov_b32 v{r}, 0x3c003c00" if r % 2 else f"    v_mov_b32 v{r}, 0x3b803b80")
    s.append(pre)
    s.append(f"    s_lshr_b32 s21, s20, 2")
    nr = len(roles)
    if nr > 1:
        s.append(f"    s_mov_b32 s22, s21")
        for k in range(4):
            s.append(f"    s_cmp_ge_u32 s22, {nr}\n    s_cselect_b32 s23, {nr}, 0\n    s_sub_u32 s22, s22, s23")
    else:
        s.append("    s_mov_b32 s22, 0")
    s.append("    s_barrier")
    s.append("    s_memtime s[12:13]\n    s_memrealtime s[16:17]")
    s.append(f"    s_mov_b32 s24, {iters}")
    s.append("    s_waitcnt lgkmcnt(0)")
    for i in range(nr):
        s.append(f"    s_cmp_eq_u32 s22, {i}\n    s_cbranch_scc1 L_role{i}")
    s.append("    s_branch L_end")
    for i, b in enumerate(roles):
        s.append(".p2align 6")
        s.append(f"L_role{i}:")
        s.append(b)
        s.append(f"    s_sub_u32 s24, s24, 1\n    s_cmp_lg_u32 s24, 0\n    s_cbranch_scc1 L_role{i}\n    s_branch L_end")
    s.append("L_end:")
    s.append("""
    s_waitcnt vmcnt(0) lgkmcnt(0)
    s_memtime s[14:15]
    s_memrealtime s[18:19]
    s_waitcnt lgkmcnt(0)
    s_sub_u32 s14, s14, s12
    s_sub_u32 s18, s18, s16
    s_lshl_b32 s25, s2, 4
    s_add_u32 s25, s25, s20
    s_lshl_b32 s25, s25, 2
    v_mov_b32 v4, s14
    v_mov_b32 v5, s25
    v_cmp_eq_u32 vcc, 0, v2
    s_and_saveexec_b64 s[26:27], vcc
    buffer_store_dword v4, v5, s[8:11], 0 offen
    v_mov_b32 v4, s18
    s_mov_b32 s18, 0x40000
    buffer_store_dword v4, v5, s[8:11], s18 offen
    s_waitcnt vmcnt(0)
    s_endpgm
""")
    s.append('.section .rodata,"a"\n.p2align 6')
    s.append(f""".amdhsa_kernel {name}
  .amdhsa_next_free_vgpr {vgpr}
  .amdhsa_next_free_sgpr 96
  .amdhsa_accum_offset {vgpr}
  .amdhsa_group_segment_fixed_size 0
  .amdhsa_kernarg_size 8
  .amdhsa_user_sgpr_count 2
  .amdhsa_user_sgpr_kernarg_segment_ptr 1
  .amdhsa_system_sgpr_workgroup_id_x 1
.end_amdhsa_kernel""")
    return "\n".join(s) + "\n"

def build(name, asm):
    from cdna_launch import with_harness_metadata
    os.makedirs("out", exist_ok=True)
    p = f"out/{name}.s"
    open(p, "w").write(with_harness_metadata(asm, name, 1))
    co = p[:-2] + ".co"
    r = subprocess.run(["clang", "-x", "assembler", "-target", "amdgcn-amd-amdhsa", "-mcpu=gfx950", p, "-o", co], capture_output=True, text=True)
    if r.returncode:
        print(r.stderr[:3000]); raise SystemExit(1)
    return co

def run(label, roles, iters=300, nwaves=4, lds=65536, vgpr=128, pre="", grid=256, unroll=8, nl=3, gap=0):
    name = "mb_kernel"
    asm = gen(name, ["\n".join([b] * unroll) for b in roles], iters, nwaves, lds, vgpr, pre)
    co = build(name, asm)
    if not os.path.exists("/dev/kfd"):
        print(label, "assembled"); return
    from cdna_launch import AsmKernel, DeviceBuffer, _hip, hip_check
    k = AsmKernel(co, name)
    buf = DeviceBuffer(1 << 20)
    hip_check(_hip.hipMemset(ctypes.c_void_p(buf.ptr), 0, 1 << 20))
    ka = struct.pack("<Q", buf.ptr)
    import time
    for _ in range(nl):
        k.launch((grid, 1, 1), (nwaves * 64, 1, 1), ka, lds)
        if gap:
            hip_check(_hip.hipDeviceSynchronize()); time.sleep(gap)
    hip_check(_hip.hipDeviceSynchronize())
    out = buf.to_numpy(np.uint32, (1 << 18,))[: grid * 16].reshape(grid, 16)[:, :nwaves]
    rt = buf.to_numpy(np.uint32, (1 << 18,))[0x10000: 0x10000 + grid * 16].reshape(grid, 16)[:, :nwaves]
    nr = len(roles)
    res = [f"clk {np.median(out / (rt * 10.0)):.3f} GHz dur {np.median(rt) / 100:.1f}us"]
    for r in range(nr):
        ws = [w for w in range(nwaves) if ((w // 4) % nr) == r]
        if ws:
            res.append(f"role{r}: med {np.median(out[:, ws]) / iters / unroll:.1f} max {np.median(out[:, ws].max(axis=1)) / iters / unroll:.1f}")
    print(f"{label:50s} waves={nwaves:2d} " + "  ".join(res), flush=True)
    k.unload(); buf.free()
```

```python
from mb import *
def rep(f, n): return "\n".join(f(i) for i in range(n))
pre = "    s_mov_b32 s30, 0x9E3779B1\n    s_mov_b32 s31, 0x85EBCA6B\n"
for r in range(112, 192):
    pre += f"""    v_add_u32 v{r}, {r*977}, v0
    v_mul_lo_u32 v{r}, v{r}, s30
    v_lshrrev_b32 v2, 15, v{r}
    v_xor_b32 v{r}, v{r}, v2
    v_mul_lo_u32 v{r}, v{r}, s31
    v_lshrrev_b32 v2, 13, v{r}
    v_xor_b32 v{r}, v{r}, v2
    v_and_b32 v{r}, 0x80ff80ff, v{r}
    v_or_b32 v{r}, 0x3f003f00, v{r}
"""
pre += "    v_and_b32 v2, 63, v0\n"
def big():
    L = []
    for k in range(4):
        F = 112 + 20 * k
        for u in range(3):
            for a in range(2):
                acc = 16 + 16 * (3 * a + u)
                L.append(f"    v_mfma_f32_32x32x16_bf16 v[{acc}:{acc+15}], v[{F+8+4*u}:{F+11+4*u}], v[{F+4*a}:{F+3+4*a}], v[{acc}:{acc+15}]")
    return "\n".join(L)
def small():
    L = []
    for k in range(2):
        F = 112 + 40 * k
        for u in range(6):
            for a in range(4):
                acc = 16 + 4 * (6 * a + u)
                L.append(f"    v_mfma_f32_16x16x32_bf16 v[{acc}:{acc+3}], v[{F+16+4*u}:{F+19+4*u}], v[{F+4*a}:{F+3+4*a}], v[{acc}:{acc+3}]")
    return "\n".join(L)
for it in (8, 2000):
    for rr in range(2):
        run("32x32x16 random", [big()], nwaves=4, vgpr=192, pre=pre, unroll=1, iters=it)
        run("16x16x32 random", [small()], nwaves=4, vgpr=192, pre=pre, unroll=1, iters=it)
        run("32x32x16 const", [big()], nwaves=4, vgpr=192, unroll=1, iters=it)
```
